```python
import torch

def _softmax(x, axis=-1):
    return torch.softmax(x, dim=axis)
def _gelu(x):
    return torch.nn.functional.gelu(x, approximate="tanh")
def _silu(x):
    return torch.nn.functional.silu(x)
def _sigmoid(x):
    return torch.sigmoid(x)
def _layernorm(x, axis=-1, eps=1e-5):
    m = x.mean(dim=axis, keepdim=True)
    v = x.var(dim=axis, keepdim=True, unbiased=False)
    return (x - m) / torch.sqrt(v + eps)
def _scatter_add(tgt, idx, src, axis=0):
    return tgt.clone().index_add_(axis, idx, src)
def _segment_sum(src, seg, n):
    out = torch.zeros((n,) + src.shape[1:], dtype=src.dtype)
    return out.index_add_(0, seg, src)
def _pad(x, pw):
    flat = tuple(v for pair in reversed(pw) for v in pair)
    return torch.nn.functional.pad(x, flat)

kernel_name = 'interleave_layers__linear_attn_block__ssm_conv_s4__prompt'

def setup_inputs():

    _w = (lambda a: (lambda t: t.to(torch.bfloat16) if t.is_floating_point() else t)(torch.as_tensor(a)))
    def _A_setup():
        B, S, D = 1, 2048, 512
        return {
            "x": _w((lambda *s: torch.randn(*s, dtype=torch.bfloat16) * 0.05)(B, S, D)),
            "wqkv": _w((lambda *s: torch.randn(*s, dtype=torch.bfloat16) * 0.05)(D, 3 * D)),
            "wo": _w((lambda *s: torch.randn(*s, dtype=torch.bfloat16) * 0.05)(D, D)),
        }
    _A_in = _A_setup()

    def _B_setup():
        B, L, D, N = 1, 2048, 512, 128
        A_re = -(lambda _x: torch.exp(torch.as_tensor(_x)))((lambda *s: torch.randn(*s, dtype=torch.bfloat16) * 1.6)(D, N))
        A_im = torch.pi * (lambda *s: torch.randn(*s, dtype=torch.bfloat16) * 0.1)(D, N)
        B_re = (lambda *s: torch.randn(*s, dtype=torch.bfloat16) * 0.1)(D, N)
        B_im = (lambda *s: torch.randn(*s, dtype=torch.bfloat16) * 0.1)(D, N)
        C_re = (lambda *s: torch.randn(*s, dtype=torch.bfloat16) * 0.1)(D, N)
        C_im = (lambda *s: torch.randn(*s, dtype=torch.bfloat16) * 0.1)(D, N)
        log_dt = (lambda *s: torch.randn(*s, dtype=torch.bfloat16) * 0.1)(D) * 0.5 - 4.0
        Dskip = (lambda *s: torch.randn(*s, dtype=torch.bfloat16) * 0.1)(D)
        return {
            "u": _w((lambda *s: torch.randn(*s, dtype=torch.bfloat16) * 0.05)(B, L, D)),
            "A_re": _w(A_re),
            "A_im": _w(A_im),
            "B_re": _w(B_re),
            "B_im": _w(B_im),
            "C_re": _w(C_re),
            "C_im": _w(C_im),
            "log_dt": _w(log_dt),
            "Dskip": _w(Dskip),
        }
    _B_in = _B_setup()

    return {
        "A_x": _A_in["x"],
        "A_wqkv": _A_in["wqkv"],
        "A_wo": _A_in["wo"],
        "B_u": _B_in["u"],
        "B_A_re": _B_in["A_re"],
        "B_A_im": _B_in["A_im"],
        "B_B_re": _B_in["B_re"],
        "B_B_im": _B_in["B_im"],
        "B_C_re": _B_in["C_re"],
        "B_C_im": _B_in["C_im"],
        "B_log_dt": _B_in["log_dt"],
        "B_Dskip": _B_in["Dskip"],
    }

def reference(A_x, A_wqkv, A_wo, B_u, B_A_re, B_A_im, B_B_re, B_B_im, B_C_re, B_C_im, B_log_dt, B_Dskip):
    def _A_ref(x, wqkv, wo):
        B, S, D = x.shape
        H = 32; Dh = D // H
        qkv = (lambda x, *d: x.permute(*d))((x @ wqkv).reshape(B, S, 3, H, Dh), 2, 0, 3, 1, 4)
        q, k, v = qkv[0], qkv[1], qkv[2]
        phi = lambda t: torch.where(t > 0, t + 1, torch.exp(t)) + 1e-6
        pq, pk = phi(q), phi(k)
        kv = torch.einsum("bhsd,bhse->bhde", pk, v)
        z = torch.einsum("bhsd->bhd", pk)
        num = torch.einsum("bhqd,bhde->bhqe", pq, kv)
        den = torch.einsum("bhqd,bhd->bhq", pq, z)[..., None] + 1e-6
        o = num / den
        return (lambda x, *d: x.permute(*d))(o, 0, 2, 1, 3).reshape(B, S, D) @ wo

    def _B_ref(u, A_re, A_im, B_re, B_im, C_re, C_im, log_dt, Dskip):
        Bsz, L, D = u.shape
        dt = torch.exp(log_dt)[:, None]
        A = A_re + 1j * A_im
        Bc = B_re + 1j * B_im
        Cc = C_re + 1j * C_im
        logdA = dt * A
        dB = dt * Bc
        l = (lambda x, dt: x.to(dt))(torch.arange(L), A_re.dtype)
        P = torch.exp(logdA[:, :, None] * l[None, None, :])
        K = torch.einsum("dn,dnl,dn->dl", Cc, P, dB).real
        L2 = 2 * L
        Kp = _pad(K, ((0, 0), (0, L)))
        up = (lambda x, *d: x.permute(*d))(u, 0, 2, 1)
        up = _pad(up, ((0, 0), (0, 0), (0, L)))
        Kf = (lambda x, axes=(-2,-1): torch.fft.rfft2(x.float(), dim=axes))(Kp[:, None, :], axes=(-2, -1))
        Uf = (lambda x, axes=(-2,-1): torch.fft.rfft2(x.float(), dim=axes))(up[:, :, None, :], axes=(-2, -1))
        Yf = Uf * Kf[None, :, :, :]
        y = (lambda x, s, axes=(-2,-1): torch.fft.irfft2(x, s=s, dim=axes).to(torch.bfloat16))(Yf, (1, L2), axes=(-2, -1))[:, :, 0, :L]
        y = (lambda x, *d: x.permute(*d))(y, 0, 2, 1) + u * Dskip[None, None, :]
        return y

    x = A_x
    x = x + _A_ref(_layernorm(x, axis=-1), A_wqkv, A_wo)
    x = x + _B_ref(_layernorm(x, axis=-1), B_A_re, B_A_im, B_B_re, B_B_im, B_C_re, B_C_im, B_log_dt, B_Dskip)
    x = x + _A_ref(_layernorm(x, axis=-1), A_wqkv, A_wo)
    x = x + _B_ref(_layernorm(x, axis=-1), B_A_re, B_A_im, B_B_re, B_B_im, B_C_re, B_C_im, B_log_dt, B_Dskip)
    return x
```

```python
import re

REG_RE = re.compile(r'^-?\|?(?:abs\()?([vas])(?:(\d+)|\[(\d+):(\d+)\])\)?\|?$')

def regs_of(tok):
    tok = tok.strip()
    if tok in ("vcc",): return {("s", 106), ("s", 107)}
    if tok == "vcc_lo": return {("s", 106)}
    if tok == "vcc_hi": return {("s", 107)}
    if tok == "exec": return {("s", 126), ("s", 127)}
    if tok == "m0": return {("s", 124)}
    if tok == "exec_lo": return {("s", 126)}
    if tok == "exec_hi": return {("s", 127)}
    m = REG_RE.match(tok)
    if not m: return set()
    f = m.group(1)
    if m.group(2) is not None:
        return {(f, int(m.group(2)))}
    return {(f, i) for i in range(int(m.group(3)), int(m.group(4)) + 1)}

def split_ops(s):
    ops, depth, cur = [], 0, ""
    for ch in s:
        if ch in "[(": depth += 1
        elif ch in "])": depth -= 1
        if ch == "," and depth == 0:
            ops.append(cur.strip()); cur = ""
        else:
            cur += ch
    if cur.strip(): ops.append(cur.strip())
    mods = []
    if ops:
        parts = ops[-1].split()
        ops[-1] = parts[0]; mods = parts[1:]
    return ops, mods

TRANS = ("v_exp_f32", "v_log_f32", "v_rcp_f32", "v_rsq_f32", "v_sqrt_f32", "v_sin_f32", "v_cos_f32")

class Ins:
    def __init__(self, text):
        self.text = text
        t = text.split(";")[0].strip()
        parts = t.split(None, 1)
        self.mn = parts[0]
        self.ops, self.mods = split_ops(parts[1]) if len(parts) > 1 else ([], [])
        mn = self.mn
        self.is_mfma = mn.startswith("v_mfma")
        self.is_valu = mn.startswith("v_") and not self.is_mfma
        self.is_ds = mn.startswith("ds_")
        self.is_vmem = mn.startswith(("buffer_", "global_", "flat_"))
        self.is_salu = mn.startswith("s_")
        self.is_trans = mn.replace("_e64", "").replace("_e32", "") in TRANS
        self.is_dot = mn.startswith("v_dot")
        self.is_dpp = "_dpp" in mn or any(m.startswith(("row_", "quad_perm", "wave_")) for m in self.mods)
        self.is_permlane = mn.startswith("v_permlane")
        self.wr, self.rd = set(), set()
        self.srcA = self.srcB = self.srcC = set()
        o = [regs_of(x) for x in self.ops]
        self.passes = 0
        self.store_data = set()
        if self.is_mfma:
            self.wr = o[0]; self.srcA, self.srcB, self.srcC = o[1], o[2], o[3]
            self.rd = o[1] | o[2] | o[3]
            self.passes = 8 if "32x32" in mn else 4
        elif self.is_valu:
            if self.is_permlane and "swap" in mn:
                self.wr = o[0] | o[1]; self.rd = o[0] | o[1]
            elif mn.startswith(("v_add_co", "v_sub_co", "v_subrev_co", "v_addc_co", "v_subb_co", "v_mad_u64", "v_div_scale")):
                self.wr = o[0] | o[1]; self.rd = set().union(*o[2:])
            else:
                self.wr = o[0]; self.rd = set().union(*o[1:]) if len(o) > 1 else set()
                if mn.startswith(("v_fmac", "v_dot2c", "v_mac", "v_pk_fmac")) or "_dpp" in mn or "_sdwa" in mn or mn.startswith("v_writelane"):
                    self.rd |= o[0]
                if mn.startswith("v_cmpx"): self.wr |= regs_of("exec")
                if mn.startswith("v_cndmask") and len(o) == 3: self.rd |= regs_of("vcc")
        elif self.is_ds:
            if mn.startswith(("ds_read", "ds_bpermute", "ds_permute", "ds_swizzle")):
                self.wr = o[0]; self.rd = set().union(*o[1:])
                if "d16" in mn: self.rd |= o[0]
            else:
                self.rd = set().union(*o)
        elif self.is_vmem:
            lds = "lds" in self.mods or "_lds_" in mn
            self.lds_dma = lds
            if "load" in mn and not lds:
                self.wr = o[0]; self.rd = set().union(*o[1:])
            else:
                self.rd = set().union(*o)
                if "atomic" in mn and "sc0" in self.mods: self.wr = o[0]
                if "store" in mn and ("x4" in mn or "x3" in mn):
                    self.store_data = o[0] if mn.startswith("buffer") else o[1]
            for m in self.mods:
                if m.startswith("offset:"):
                    v = int(m.split(":")[1], 0)
                    if mn.startswith("buffer"): assert 0 <= v < 4096, text
                    else: assert -4096 <= v < 4096, text
        elif self.is_salu:
            if mn.startswith(("s_cmp", "s_cbranch", "s_branch", "s_waitcnt", "s_barrier", "s_nop", "s_endpgm", "s_sleep", "s_setprio", "s_bitcmp")):
                self.rd = set().union(*o) if o else set()
            else:
                self.wr = o[0] if o else set(); self.rd = set().union(*o[1:]) if len(o) > 1 else set()
                if "saveexec" in mn: self.wr = self.wr | regs_of("exec")
        if self.is_ds:
            for m in self.mods:
                if m.startswith("offset:"):
                    assert 0 <= int(m.split(":")[1], 0) < 65536, text
                if m.startswith(("offset0:", "offset1:")):
                    assert 0 <= int(m.split(":")[1], 0) < 256, text
        self.states = 1
        if mn == "s_nop": self.states = int(self.ops[0], 0) + 1

def vg(s): return {r for r in s if r[0] in "va"}
def sg(s): return {r for r in s if r[0] == "s"}

def need(p, c):
    n = 0
    if p.is_valu:
        vw = vg(p.wr); sw = sg(p.wr)
        if c.is_mfma and vw & c.rd: n = max(n, 3 if p.is_dot else 2)
        if c.is_valu:
            if p.is_trans and not c.is_trans and vw & c.rd: n = max(n, 1)
            if p.is_trans and c.is_trans and vw & c.rd: n = max(n, 1)
            if c.is_dpp and vw & c.rd: n = max(n, 2)
            if c.is_permlane and vw & c.rd: n = max(n, 2)
            if c.mn.startswith(("v_readfirstlane", "v_readlane")) and vw & c.rd: n = max(n, 1)
            if sw & c.rd: n = max(n, 4 if c.mn.startswith(("v_readlane", "v_writelane")) else 2)
            if p.is_dot and p.mn != c.mn and vw & (c.rd | c.wr): n = max(n, 3)
            if p.is_dot and p.mn == c.mn and vw & (c.rd - c.wr): n = max(n, 3)
            if ("_sdwa" in p.mn or any(m.startswith("op_sel") for m in p.mods) and not p.mn.startswith("v_pk")) and vw & (c.rd | c.wr): n = max(n, 1)
            if ("s", 126) in sw and c.is_dpp: n = max(n, 5)
        if p.is_dot and (c.is_ds or c.is_vmem) and vw & c.rd: n = max(n, 3)
        if p.is_trans and (c.is_ds or c.is_vmem) and vw & c.rd: n = max(n, 1)
        if c.is_vmem and sw & c.rd: n = max(n, 5)
        if ("s", 126) in sw and c.is_mfma: n = max(n, 4)
        if c.is_salu and sw & c.rd: n = max(n, 1)
    if p.is_mfma:
        d = p.wr
        big = {4: 8, 8: 12}[p.passes]
        if c.is_mfma:
            if d & (c.srcA | c.srcB): n = max(n, big)
            if d & c.srcC:
                if not (c.srcC == d and c.passes == p.passes): n = max(n, big - 2)
            elif d & c.wr: n = max(n, big - 2)
        elif (c.is_valu or c.is_ds or c.is_vmem) and d & (c.rd | c.wr): n = max(n, big)
        if (c.is_valu or c.is_ds or c.is_vmem) and p.srcC & c.wr: n = max(n, {4: 3, 8: 7}[p.passes])
    if p.is_salu and ("s", 124) in p.wr and c.is_vmem and getattr(c, "lds_dma", False): n = max(n, 1)
    if p.is_vmem and p.store_data and (c.is_valu or c.is_mfma or c.is_ds or c.is_vmem) and p.store_data & c.wr: n = max(n, 2)
    return n

class Asm:
    def __init__(self):
        self.lines = []
        self.hist = []
        self.nops = 0
    def raw(self, text):
        self.lines.append(text)
    def label(self, name):
        self.lines.append(f"{name}:")
    def __call__(self, text):
        for line in text.strip("\n").split("\n"):
            t = line.strip()
            if not t or t.startswith(";"):
                if t: self.lines.append("    " + t)
                continue
            if t.endswith(":") or t.startswith("."):
                self.lines.append(t); continue
            ins = Ins(t)
            dist = 0; req = 0
            for p in reversed(self.hist[-24:]):
                r = need(p, ins) - dist
                if r > req: req = r
                dist += p.states
                if dist > 20: break
            while req > 0:
                k = min(req, 16)
                nop = Ins(f"s_nop {k-1}")
                self.hist.append(nop); self.lines.append(f"    s_nop {k-1}"); self.nops += 1
                req -= k
            self.hist.append(ins); self.lines.append("    " + t)
    def loop_check(self, start_idx):
        body = self.hist[start_idx:]
        worst = 0
        for i, c in enumerate(body[:24]):
            dist = sum(x.states for x in body[:i])
            for p in reversed(body):
                r = need(p, c) - dist
                worst = max(worst, r)
                dist += p.states
                if dist > 20: break
        return worst
    def mark(self): return len(self.hist)
    def text(self): return "\n".join(self.lines) + "\n"

def vr(a, n=1): return f"v{a}" if n == 1 else f"v[{a}:{a+n-1}]"
def ar(a, n=1): return f"a{a}" if n == 1 else f"a[{a}:{a+n-1}]"
def sr(a, n=1): return f"s{a}" if n == 1 else f"s[{a}:{a+n-1}]"
```

```python
from asmdsl import Asm, vr, ar, sr

NAME = "interleave_layers__linear_attn_block__ssm_conv_s4__prompt"
KA_X, KA_WQKV, KA_WO, KA_U, KA_ARE, KA_AIM, KA_BRE, KA_BIM, KA_CRE, KA_CIM, KA_LDT, KA_DSK, KA_OUT, KA_DBG, KA_WS = [8*i for i in range(15)]
KPITCH = 4224
WS_K   = 0x000000
WS_PQ  = 0x220000
WS_XT1 = 0x420000
WS_XT2 = 0x620000
WS_XT3 = 0x820000
WS_KV1 = 0xA20000
WS_KV2 = 0xA29000
WS_ST1 = 0xA32000
WS_ST2 = 0xA36000
WS_END = 0xA3A000
WS_STAMP = 0xB00000
WS_SIZE = 0xC00000
LOG2E = 1.4426950408889634
import struct
def f32(x): return "0x%08x" % struct.unpack("<I", struct.pack("<f", x))[0]

def srd(a, base, lo, hi, nbytes):
    a(f"""
    s_mov_b32 s{base}, s{lo}
    s_and_b32 s{base+1}, s{hi}, 0xffff
    s_mov_b32 s{base+2}, {hex(nbytes)}
    s_mov_b32 s{base+3}, 0x20000
    """)

def kernel_head(a, name):
    a.raw(f".globl {name}")
    a.raw(".p2align 8")
    a.raw(f".type {name},@function")
    a.raw(f"{name}:")
    a.hist = []

def descriptor(name, vgpr, sgpr=96, accum=None):
    accum = accum if accum is not None else (vgpr + 3) // 4 * 4
    return f""".p2align 6
.amdhsa_kernel {name}
  .amdhsa_next_free_vgpr {vgpr}
  .amdhsa_next_free_sgpr {sgpr}
  .amdhsa_accum_offset {accum}
  .amdhsa_group_segment_fixed_size 0
  .amdhsa_kernarg_size 120
  .amdhsa_user_sgpr_count 2
  .amdhsa_user_sgpr_kernarg_segment_ptr 1
  .amdhsa_system_sgpr_workgroup_id_x 1
.end_amdhsa_kernel
"""

import os
STAMPS = os.environ.get("STAMPS", "0") == "1"
NSTAMP = 8
def stamp(a, idx):
    if STAMPS: a(f"s_memrealtime s[{76+2*idx}:{77+2*idx}]")
def stamp_init(a):
    if STAMPS:
        for i in range(1, NSTAMP): a(f"s_mov_b32 s{76+2*i}, 0")
        stamp(a, 0)
def stamp_dump(a, launch, wave_sgpr):
    if not STAMPS: return
    a("s_waitcnt vmcnt(0)")
    stamp(a, 7)
    srd(a, 92, 10, 11, WS_SIZE)
    a(f"""
    s_lshl_b32 s3, s2, 3
    s_add_u32 s3, s3, s{wave_sgpr}
    s_lshl_b32 s3, s3, 5
    s_add_u32 s3, s3, {hex(WS_STAMP + launch*0x10000)}
    s_mov_b64 exec, 1
    v_mov_b32 v40, 0
    s_waitcnt lgkmcnt(0)
    """)
    for h in range(2):
        for i in range(4): a(f"v_mov_b32 v{44+i}, s{76+2*(4*h+i)}")
        a(f"buffer_store_dwordx4 v[44:47], v40, s[92:95], s3 offen offset:{16*h}")
        a("s_nop 1")
```

```python
from common import *

A_RING = 131072
A_STAT = A_RING
A_SCR  = A_RING + 2048
A_LDS  = A_SCR + 8192 + 1024

def zero_kv1(a, tag):
    a(f"""
    v_lshlrev_b32 v64, 4, v1
    v_mov_b32 v60, 0
    v_mov_b32 v61, 0
    v_mov_b32 v62, 0
    v_mov_b32 v63, 0
    s_mov_b32 s40, {hex(WS_KV1)}
    L_zero_{tag}:
    buffer_store_dwordx4 v[60:63], v64, s[20:23], s40 offen sc0 sc1
    s_add_u32 s40, s40, 1024
    s_cmp_lt_u32 s40, {hex(WS_KV1 + 34816)}
    s_cbranch_scc1 L_zero_{tag}
    """)

def set_flag(a):
    a("""
    s_waitcnt vmcnt(0)
    v_mov_b32 v60, 1
    v_mov_b32 v61, 64
    buffer_store_dword v60, v61, s[24:27], 0 offen sc0 sc1
    """)

def gen_A(a, layer, kgen=None):
    L = f"A{layer}"
    name = f"qkv{layer}_kernel"
    nwg = 256 if layer == 1 else 192
    kernel_head(a, name)
    a(f"""
    s_cmp_ge_u32 s2, {nwg}
    s_cbranch_scc1 L_exit_{L}
    """)
    stamp_init(a)
    a(f"""
    s_load_dwordx4 s[4:7], s[0:1], 0
    s_load_dwordx4 s[8:11], s[0:1], {KA_DBG}
    v_lshrrev_b32 v2, 6, v0
    v_and_b32 v1, 63, v0
    s_and_b32 s36, s2, 7
    s_lshr_b32 s37, s2, 3
    v_readfirstlane_b32 s28, v2
    """)
    if layer == 1:
        a(f"""
        s_cmp_ge_u32 s37, 24
        s_cbranch_scc1 L_kgen
        """)
    a(f"""
    s_and_b32 s29, s36, 3
    s_lshl_b32 s29, s29, 2
    s_and_b32 s38, s37, 3
    s_add_u32 s29, s29, s38          ; rb
    s_lshr_b32 s30, s37, 2           ; j 0..5
    s_lshr_b32 s31, s36, 2           ; half
    s_lshl_b32 s33, s38, 1
    s_add_u32 s33, s33, s30
    s_add_u32 s33, s33, s36
    s_and_b32 s33, s33, 7
    s_lshl_b32 s34, s31, 2
    s_add_u32 s34, s34, s30          ; cbkv
    s_lshl_b32 s35, s31, 1
    s_add_u32 s35, s35, s30
    s_sub_u32 s35, s35, 4            ; cbq
    s_cmp_ge_u32 s28, 4
    s_cbranch_scc1 L_help_{L}
    """)
    a(f"""
    s_lshr_b32 s41, s28, 1           ; rh
    s_and_b32 s42, s28, 1            ; cw
    v_lshrrev_b32 v3, 5, v1
    v_bfe_u32 v4, v1, 2, 2           ; r
    v_lshl_add_u32 v5, v3, 3, v4     ; 8*khalf + r
    v_lshlrev_b32 v5, 8, v5
    v_bfe_u32 v6, v1, 4, 1
    v_lshl_add_u32 v5, v6, 5, v5
    v_and_b32 v6, 3, v1
    v_lshl_add_u32 v5, v6, 3, v5
    v_xor_b32 v6, s42, v4
    v_lshl_add_u32 v8, v6, 6, v5
    v_add_u32 v8, 16384, v8
    v_xor_b32 v9, 128, v8
    """)
    if layer == 1:
        a(f"""
        v_and_b32 v6, 31, v1
        v_bfe_u32 v7, v1, 1, 3
        v_xor_b32 v7, v7, v3
        v_lshlrev_b32 v7, 4, v7
        v_lshl_add_u32 v7, v6, 7, v7
        s_lshl_b32 s43, s41, 13
        v_add_u32 v4, s43, v7
        v_xor_b32 v5, 32, v4
        v_xor_b32 v6, 64, v4
        v_xor_b32 v7, 96, v4
        """)
        NA = 4
    else:
        a(f"""
        s_lshl_b32 s43, s41, 1
        v_xor_b32 v6, s43, v4
        v_lshl_add_u32 v4, v6, 6, v5
        v_xor_b32 v5, 64, v4
        """)
        NA = 2
    for i in range(64):
        a(f"v_mov_b32 v{64+i}, 0")
    def setcur(soff):
        for i in range(NA): a(f"v_add_u32 v{10+i}, {soff}, v{4+i}")
        for i in range(2): a(f"v_add_u32 v{14+i}, {soff}, v{8+i}")
    def fa(s, mt): return 16 + 16*s + 4*mt
    def fb(s, nt): return 24 + 16*s + 4*nt
    def T(mt, nt): return 64 + 16*(2*mt+nt)
    def reads(s, ks):
        out = []
        for mt in range(2):
            if layer == 1:
                out.append(f"ds_read_b128 {vr(fa(s,mt),4)}, v{10+ks} offset:{mt*4096}")
            else:
                for q in range(2):
                    out.append(f"ds_read_b64_tr_b16 {vr(fa(s,mt)+2*q,2)}, v{10+mt} offset:{ks*4096+q*1024}")
        for nt in range(2):
            for q in range(2):
                out.append(f"ds_read_b64_tr_b16 {vr(fb(s,nt)+2*q,2)}, v{14+nt} offset:{ks*4096+q*1024}")
        return out
    NR = 6 if layer == 1 else 8
    a("s_mov_b32 s44, 0")
    setcur("s44")
    a("s_mov_b32 s45, 0")
    a("s_waitcnt lgkmcnt(0)")
    srd(a, 20, 10, 11, WS_SIZE)
    a(f"""
    s_cmp_ge_u32 s30, 4
    s_cbranch_scc1 L_mq_{L}
    """)
    for typ in ("kv", "q"):
        if typ == "q": a.label(f"L_mq_{L}")
        def mfmas(s):
            out = []
            for mt in range(2):
                for nt in range(2):
                    x, w = vr(fa(s,mt),4), vr(fb(s,nt),4)
                    A_, B_ = (x, w) if typ == "kv" else (w, x)
                    out.append(f"v_mfma_f32_32x32x16_bf16 {vr(T(mt,nt),16)}, {A_}, {B_}, {vr(T(mt,nt),16)}")
            return out
        stamp(a, 1)
        a("s_barrier")
        stamp(a, 2)
        for r in reads(0, 0): a(r)
        a.raw(".p2align 3")
        a.label(f"L_loop_{typ}_{L}")
        m0 = a.mark()
        for ks in range(3):
            s = ks & 1
            rd = reads(1-s, ks+1); mf = mfmas(s)
            a("s_waitcnt lgkmcnt(0)")
            a(mf[0])
            for r in rd: a(r)
            for i in range(1, 4): a(mf[i])
        mf = mfmas(1)
        a(f"""
        s_add_u32 s44, s44, 32768
        s_and_b32 s44, s44, 0x1ffff
        s_add_u32 s45, s45, 1
        s_cmp_eq_u32 s45, 8
        s_waitcnt lgkmcnt(0)
        """)
        a(mf[0])
        a(f"s_cbranch_scc1 L_last_{typ}_{L}")
        setcur("s44")
        a("s_barrier")
        a(mf[1])
        for r in reads(0, 0): a(r)
        a(mf[2])
        a(mf[3])
        a(f"s_branch L_loop_{typ}_{L}")
        assert a.loop_check(m0) <= 0
        a.label(f"L_last_{typ}_{L}")
        for i in range(1, 4): a(mf[i])
        stamp(a, 3)
        if typ == "kv": epi_kv(a, L, layer)
        else: epi_q(a, L, layer)
    helper(a, L, layer)
    if layer == 1 and kgen is not None:
        a.label("L_kgen")
        kgen(a)
    elif layer == 1:
        a.label("L_kgen")
    a.label(f"L_end_{L}")
    stamp_dump(a, 0 if layer == 1 else 3, 28)
    a.label(f"L_exit_{L}")
    a("s_endpgm")
    return name, nwg, 512, A_LDS

def phi_pair(a, dst, acc, c_nm, c_cs, rs, r2, tmp, nm_b, cs_b, rs_b):
    t, t2, t1 = tmp, tmp+2, tmp+4
    def hi(b): return 0 if b else 1
    a(f"v_pk_fma_f32 {vr(t,2)}, {vr(c_nm,2)}, {vr(c_cs,2)}, {vr(acc,2)} op_sel_hi:[{hi(nm_b)},{hi(cs_b)},1]")
    a(f"v_pk_mul_f32 {vr(t2,2)}, {vr(t,2)}, {vr(r2,2)} op_sel_hi:[1,{hi(rs_b)}]")
    a(f"v_pk_fma_f32 {vr(t1,2)}, {vr(t,2)}, {vr(rs,2)}, 1.0 op_sel_hi:[1,{hi(rs_b)},0]")
    a(f"v_exp_f32_e64 v{t2}, v{t2} clamp")
    a(f"v_exp_f32_e64 v{t2+1}, v{t2+1} clamp")
    a(f"v_max_f32 v{t1}, v{t1}, v{t2}")
    a(f"v_max_f32 v{t1+1}, v{t1+1}, v{t2+1}")
    a(f"v_pk_add_f32 {vr(t1,2)}, {vr(t1,2)}, s[46:47]")
    a(f"v_cvt_pk_bf16_f32 v{dst}, v{t1}, v{t1+1}")

def epi_kv(a, L, layer):
    KV = WS_KV1 if layer == 1 else WS_KV2
    a(f"""
    s_mov_b32 s46, {f32(1e-6)}
    s_mov_b32 s47, {f32(1e-6)}
    s_mov_b32 s48, 0x3f803f80
    s_lshl_b32 s43, s41, 8
    s_add_u32 s43, s43, {A_STAT}
    v_lshl_add_u32 v10, v3, 4, s43
    v_and_b32 v11, 31, v1
    s_lshl_b32 s43, s42, 7
    s_add_u32 s43, s43, {A_STAT + 1536}
    v_lshl_add_u32 v11, v11, 2, s43
    s_barrier
    ds_read_b32 v16, v11
    ds_read_b32 v18, v11 offset:256
    """)
    for mt in range(2):
        for tb, base in enumerate((128, 160, 192)):
            for q in range(4):
                a(f"ds_read_b128 {vr(base+16*mt+4*q,4)}, v10 offset:{tb*512 + mt*128 + q*32}")
    stamp(a, 4)
    a("v_mov_b32 v56, 0")
    a("s_waitcnt lgkmcnt(12)")
    PK, PV = 24, 40
    for mt in range(2):
        if mt == 1: a("s_waitcnt lgkmcnt(0)")
        for p in range(8):
            r = 2*p
            phi_pair(a, PK+8*mt+p, 64+32*mt+r, 128+16*mt+r, 16, 160+16*mt+r, 192+16*mt+r, 224 + 6*(p&1), False, True, False)
            t = 236 + 2*(p&1)
            a(f"v_pk_fma_f32 {vr(t,2)}, {vr(128+16*mt+r,2)}, v[18:19], {vr(64+32*mt+16+r,2)} op_sel_hi:[1,0,1]")
            a(f"v_pk_mul_f32 {vr(t,2)}, {vr(t,2)}, {vr(160+16*mt+r,2)}")
            a(f"v_cvt_pk_bf16_f32 v{PV+8*mt+p}, v{t}, v{t+1}")
            a(f"v_dot2c_f32_bf16 v56, s48, v{PK+8*mt+p}")
            if p in (3, 7):
                j = p >> 2
                c = "0" if (mt == 0 and j == 0) else "v[240:255]"
                a(f"v_mfma_f32_32x32x16_bf16 v[240:255], {vr(PK+8*mt+4*j,4)}, {vr(PV+8*mt+4*j,4)}, {c}")
    a(f"""
    s_lshl_b32 s43, s28, 11
    s_add_u32 s43, s43, {A_SCR}
    v_bfe_u32 v10, v1, 4, 1
    v_lshlrev_b32 v10, 10, v10
    v_lshl_add_u32 v10, v3, 8, v10
    v_and_b32 v11, 15, v1
    v_lshl_add_u32 v10, v11, 4, v10
    v_add_u32 v10, s43, v10
    s_lshl_b32 s43, s28, 8
    s_add_u32 s43, s43, {A_SCR + 8192}
    v_lshl_add_u32 v11, v1, 2, s43
    ds_write_b32 v11, v56
    s_mov_b32 s50, 0x0000ffff
    s_mov_b32 s51, 0x0000ffff
    s_mov_b64 exec, s[50:51]
    ds_write_b128 v10, v[240:243]
    ds_write_b128 v10, v[244:247] offset:512
    s_not_b64 exec, exec
    ds_write_b128 v10, v[248:251]
    ds_write_b128 v10, v[252:255] offset:512
    s_mov_b64 exec, -1
    s_waitcnt lgkmcnt(0)
    s_branch L_kvfin_{L}
    """)

def kv_final(a, L, layer):
    KV = WS_KV1 if layer == 1 else WS_KV2
    a.label(f"L_kvfin_{L}")
    stamp(a, 5)
    a(f"""
    v_lshlrev_b32 v10, 2, v0
    v_add_u32 v11, {A_SCR}, v10
    s_lshl_b32 s43, s34, 12
    s_add_u32 s43, s43, {hex(KV)}
    s_barrier
    ds_read_b32 v12, v11
    ds_read_b32 v13, v11 offset:4096
    ds_read_b32 v14, v11 offset:2048
    ds_read_b32 v15, v11 offset:6144
    s_waitcnt lgkmcnt(2)
    v_add_f32 v12, v12, v13
    buffer_atomic_add_f32 v12, v10, s[20:23], s43 offen
    s_waitcnt lgkmcnt(0)
    v_add_f32 v14, v14, v15
    buffer_atomic_add_f32 v14, v10, s[20:23], s43 offen offset:2048
    s_cmp_lg_u32 s28, 7
    s_cbranch_scc1 L_end_{L}
    v_lshrrev_b32 v12, 5, v1
    v_and_b32 v13, 31, v1
    v_lshlrev_b32 v13, 2, v13
    v_lshl_add_u32 v13, v12, 8, v13
    v_add_u32 v13, {A_SCR + 8192}, v13
    ds_read_b32 v16, v13
    ds_read_b32 v17, v13 offset:128
    ds_read_b32 v18, v13 offset:512
    ds_read_b32 v19, v13 offset:640
    s_lshl_b32 s43, s34, 8
    s_add_u32 s43, s43, {hex(KV + 32768)}
    v_lshlrev_b32 v10, 2, v1
    s_waitcnt lgkmcnt(0)
    v_add_f32 v16, v16, v17
    v_add_f32 v18, v18, v19
    v_add_f32 v16, v16, v18
    buffer_atomic_add_f32 v16, v10, s[20:23], s43 offen
    s_branch L_end_{L}
    """)

def epi_q(a, L, layer):
    a(f"""
    s_mov_b32 s46, {f32(1e-6)}
    s_mov_b32 s47, {f32(1e-6)}
    v_and_b32 v11, 31, v1
    s_lshl_b32 s43, s41, 8
    s_add_u32 s43, s43, {A_STAT}
    v_lshl_add_u32 v10, v11, 2, s43
    s_lshl_b32 s43, s42, 7
    s_add_u32 s43, s43, {A_STAT + 1536}
    v_lshl_add_u32 v11, v3, 4, s43
    v_lshlrev_b32 v12, 4, v1
    s_lshl_b32 s43, s29, 17
    s_lshl_b32 s49, s41, 16
    s_add_u32 s43, s43, s49
    s_lshl_b32 s49, s35, 13
    s_add_u32 s43, s43, s49
    s_lshl_b32 s49, s42, 11
    s_add_u32 s43, s43, s49
    s_add_u32 s43, s43, {hex(WS_PQ)}
    s_barrier
    """)
    for mt in range(2):
        for tb in range(3):
            a(f"ds_read_b32 v{16+6*mt+2*tb}, v10 offset:{tb*512+mt*128}")
    for nt in range(2):
        for q in range(4):
            a(f"ds_read_b128 {vr(128+16*nt+4*q,4)}, v11 offset:{nt*256+q*32}")
    stamp(a, 4)
    a("s_waitcnt lgkmcnt(4)")
    k = 0
    for nt in range(2):
        if nt == 1: a("s_waitcnt lgkmcnt(0)")
        for mt in range(2):
            for X in range(2):
                dst = 32 + 4*(k & 3); k += 1
                for p in range(4):
                    r = 8*X + 2*p
                    phi_pair(a, dst+p, 64+16*(2*mt+nt)+r, 16+6*mt, 128+16*nt+r, 18+6*mt, 20+6*mt, 224+6*(p&1), True, False, True)
                a(f"s_add_u32 s49, s43, {mt*32768 + nt*4096}")
                a(f"buffer_store_dwordx4 {vr(dst,4)}, v12, s[20:23], s49 offen offset:{X*1024}")
    stamp(a, 5)
    a(f"s_branch L_end_{L}")

def helper(a, L, layer):
    a.label(f"L_help_{L}")
    a(f"""
    s_sub_u32 s41, s28, 4            ; hw
    v_lshrrev_b32 v10, 4, v1         ; l>>4
    v_and_b32 v11, 15, v1
    v_lshlrev_b32 v12, 2, v10
    v_xor_b32 v11, v11, v12          ; lc
    s_lshl_b32 s43, s41, 4
    v_add_u32 v12, s43, v10          ; 16hw + (l>>4)
    ; W offsets
    s_cmp_ge_u32 s30, 4
    s_cselect_b32 s49, 0, 896
    v_lshrrev_b32 v13, 3, v11
    v_mul_u32_u24 v13, s49, v13
    v_lshl_add_u32 v13, v11, 4, v13
    v_mul_u32_u24 v6, 3072, v12
    v_add_u32 v6, v6, v13
    v_add_u32 v7, {12288-1024}, v6
    v_add_u32 v8, {2*(12288-1024)}, v6
    v_add_u32 v9, {3*(12288-1024)}, v6
    s_lshl_b32 s50, s34, 7
    s_add_u32 s50, s50, 1024
    s_lshl_b32 s51, s35, 8
    s_cmp_ge_u32 s30, 4
    s_cselect_b32 s50, s51, s50
    """)
    if layer == 1:
        a(f"""
        v_lshrrev_b32 v2, 3, v1
        s_lshl_b32 s43, s41, 5
        v_add_u32 v2, s43, v2
        v_lshlrev_b32 v2, 10, v2
        v_and_b32 v3, 7, v1
        v_xor_b32 v3, v3, v10
        v_lshl_add_u32 v2, v3, 4, v2
        v_xor_b32 v3, 64, v2
        v_add_u32 v3, 7168, v3
        v_add_u32 v4, 14336, v2
        v_add_u32 v5, 14336, v3
        s_lshl_b32 s51, s29, 17          ; x base
        """)
        XSTEP = 128
    else:
        a(f"""
        v_lshlrev_b32 v2, 12, v12
        v_lshl_add_u32 v2, v11, 4, v2
        v_add_u32 v3, {16384-1024}, v2
        v_add_u32 v4, {2*(16384-1024)}, v2
        v_add_u32 v5, {3*(16384-1024)}, v2
        s_lshl_b32 s51, s29, 8
        s_add_u32 s51, s51, {hex(WS_XT2)}
        """)
        XSTEP = 262144
    a(f"""
    v_lshrrev_b32 v14, 5, v1         ; half
    v_bfe_u32 v15, v1, 2, 2          ; r
    v_lshl_add_u32 v16, v14, 3, v15
    v_lshlrev_b32 v16, 8, v16
    v_bfe_u32 v17, v1, 4, 1
    v_lshl_add_u32 v16, v17, 5, v16
    v_and_b32 v17, 3, v1
    v_lshl_add_u32 v16, v17, 3, v16
    v_xor_b32 v17, s41, v15
    v_lshl_add_u32 v16, v17, 6, v16
    """)
    if layer == 1:
        a(f"""
        v_and_b32 v17, 31, v1
        v_bfe_u32 v18, v1, 1, 3
        v_xor_b32 v18, v18, v14
        v_lshlrev_b32 v18, 4, v18
        v_lshl_add_u32 v17, v17, 7, v18
        s_lshl_b32 s43, s41, 12
        v_add_u32 v17, s43, v17
        v_xor_b32 v18, 32, v17
        v_xor_b32 v19, 64, v17
        v_xor_b32 v20, 96, v17
        """)
    a(f"""
    v_mov_b32 v26, 0
    v_mov_b32 v27, 0
    v_mov_b32 v28, 0
    v_mov_b32 v29, 0
    v_mov_b32 v30, 0
    v_mov_b32 v31, 0
    s_mov_b32 s48, 0x3f803f80
    s_lshl_b32 s52, s41, 12
    s_mov_b32 s53, s33
    s_waitcnt lgkmcnt(0)
    """)
    srd(a, 20, 10, 11, WS_SIZE)
    srd(a, 16, 6, 7, 512*1536*2)
    XS = 12 if layer == 1 else 20
    if layer == 1:
        srd(a, 12, 4, 5, 2048*512*2)
        srd(a, 24, 8, 9, 256)
    def dma():
        a(f"""
        s_mul_i32 s54, s53, {XSTEP}
        s_add_u32 s54, s54, s51
        s_mul_i32 s55, s53, 196608
        s_add_u32 s55, s55, s50
        s_mov_b32 m0, s52
        s_add_u32 s53, s53, 1
        """)
        for i in range(4):
            a(f"buffer_load_dwordx4 v{2+i}, {sr(XS,4)}, s54 offen offset:{i*1024} lds")
        a("s_add_u32 m0, s52, 16384")
        a("s_and_b32 s53, s53, 7")
        for i in range(4):
            a(f"buffer_load_dwordx4 v{6+i}, s[16:19], s55 offen offset:{i*1024} lds")
        a("""
        s_add_u32 s52, s52, 32768
        s_and_b32 s52, s52, 0x1ffff
        """)
    stamp(a, 1)
    a("s_mov_b32 s45, 0")
    a.label(f"L_hpro_{L}")
    dma()
    a(f"""
    s_add_u32 s45, s45, 1
    s_cmp_lt_u32 s45, 3
    s_cbranch_scc1 L_hpro_{L}
    s_mov_b32 s45, 0
    s_mov_b32 s44, 0
    """)
    stamp(a, 2)
    a("""
    s_waitcnt vmcnt(16)
    """)
    stamp(a, 6)
    a("s_barrier")
    a.label(f"L_hloop_{L}")
    m0 = a.mark()
    a("v_add_u32 v21, s44, v16")
    if layer == 1:
        for i in range(4): a(f"v_add_u32 v{22+i}, s44, v{17+i}")
        for i in range(4): a(f"ds_read_b128 {vr(32+4*i,4)}, v{22+i}")
    else:
        for ks in range(4):
            for q in range(2): a(f"ds_read_b64_tr_b16 {vr(32+4*ks+2*q,2)}, v21 offset:{ks*4096+q*1024}")
    for ks in range(4):
        for q in range(2): a(f"ds_read_b64_tr_b16 {vr(48+4*ks+2*q,2)}, v21 offset:{16384+ks*4096+q*1024}")
    a(f"""
    s_cmp_ge_u32 s45, 5
    s_cbranch_scc1 L_hnod_{L}
    """)
    dma()
    a.label(f"L_hnod_{L}")
    a("s_waitcnt lgkmcnt(0)")
    for i in range(16):
        a(f"v_dot2c_f32_bf16 v{26+(i&1)}, s48, v{32+i}")
        a(f"v_dot2c_f32_bf16 v{28+(i&1)}, v{32+i}, v{32+i}")
        a(f"v_dot2c_f32_bf16 v{30+(i&1)}, s48, v{48+i}")
    a(f"""
    s_add_u32 s44, s44, 32768
    s_and_b32 s44, s44, 0x1ffff
    s_add_u32 s45, s45, 1
    s_cmp_eq_u32 s45, 8
    s_cbranch_scc1 L_hfin_{L}
    s_cmp_lt_u32 s45, 6
    s_cbranch_scc1 L_hw16_{L}
    s_cmp_eq_u32 s45, 6
    s_cbranch_scc1 L_hw8_{L}
    s_waitcnt vmcnt(0)
    L_hw8_{L}:
    s_waitcnt vmcnt(8)
    L_hw16_{L}:
    s_waitcnt vmcnt(16)
    s_barrier
    s_branch L_hloop_{L}
    """)
    a.label(f"L_hfin_{L}")
    stamp(a, 3)
    if layer == 1:
        a("""
        v_mov_b32 v61, 64
        buffer_load_dword v60, v61, s[24:27], 0 offen sc0 sc1
        """)
    a(f"""
    s_nop 2
    v_add_f32 v26, v26, v27
    v_add_f32 v28, v28, v29
    v_add_f32 v30, v30, v31
    v_mov_b32 v27, v26
    v_mov_b32 v29, v28
    v_mov_b32 v31, v30
    v_permlane32_swap_b32 v26, v27
    v_permlane32_swap_b32 v28, v29
    v_permlane32_swap_b32 v30, v31
    v_add_f32 v26, v26, v27
    v_add_f32 v28, v28, v29
    v_add_f32 v30, v30, v31
    v_mul_f32 v26, {f32(-1.0/512)}, v26      ; -mean
    v_mul_f32 v27, v26, v26
    v_mov_b32 v32, {f32(1.0/512)}
    v_fma_f32 v28, v28, v32, -v27
    v_max_f32 v28, 0, v28
    v_add_f32 v28, {f32(1e-5)}, v28
    v_rsq_f32 v28, v28
    v_and_b32 v33, 31, v1
    s_lshl_b32 s43, s41, 7
    s_add_u32 s43, s43, {A_STAT}
    v_lshl_add_u32 v33, v33, 2, s43
    v_mul_f32 v29, {f32(LOG2E)}, v28
    ds_write_b32 v33, v26
    ds_write_b32 v33, v28 offset:512
    ds_write_b32 v33, v29 offset:1024
    ds_write_b32 v33, v30 offset:1536
    s_waitcnt lgkmcnt(0)
    s_barrier
    s_cmp_ge_u32 s30, 4
    s_cbranch_scc1 L_end_{L}
    """)
    if layer == 1:
        a(f"""
        s_cmp_lg_u32 s41, 0
        s_cbranch_scc1 L_kvfin_{L}
        s_mov_b32 s56, 0
        L_fpoll:
        s_waitcnt vmcnt(0)
        v_readfirstlane_b32 s43, v60
        s_cmp_lg_u32 s43, 0
        s_cbranch_scc1 L_kvfin_{L}
        s_cmp_lg_u32 s56, 0
        s_cbranch_scc1 L_fagain
        s_mov_b32 s56, 1
        v_mov_b32 v60, 1
        v_mov_b32 v61, 0
        s_mov_b64 exec, 1
        buffer_atomic_add v60, v61, s[24:27], 0 offen sc0 sc1
        s_waitcnt vmcnt(0)
        s_mov_b64 exec, -1
        v_readfirstlane_b32 s43, v60
        s_cmp_lg_u32 s43, 0
        s_cbranch_scc1 L_fagain
        """)
        zero_kv1(a, "fb")
        set_flag(a)
        a(f"""
        L_fagain:
        s_sleep 2
        v_mov_b32 v61, 64
        buffer_load_dword v60, v61, s[24:27], 0 offen sc0 sc1
        s_branch L_fpoll
        """)
    kv_final(a, L, layer)
```

```python
from common import *
VGPR = 192
B_WO = 0
B_KV = 65536
B_XR = 65536 + 17408
B_EX = B_XR + 8192
B_ST = B_EX + 16384
B_LDS = B_ST + 64*144

def gen_B(a, layer):
    L = f"B{layer}"
    name = f"out{layer}_kernel"
    KV = WS_KV1 if layer == 1 else WS_KV2
    ST = WS_ST1 if layer == 1 else WS_ST2
    XO = WS_XT1 if layer == 1 else WS_XT3
    kernel_head(a, name)
    a(f"""
    s_cmp_ge_u32 s2, 256
    s_cbranch_scc1 L_exit_{L}
    """)
    stamp_init(a)
    a(f"""
    s_load_dwordx2 s[10:11], s[0:1], {KA_WS}
    s_load_dwordx2 s[6:7], s[0:1], {KA_WO}
    s_load_dwordx2 s[4:5], s[0:1], {KA_X}
    v_lshrrev_b32 v2, 6, v0
    v_and_b32 v1, 63, v0
    s_and_b32 s36, s2, 7
    s_lshr_b32 s37, s2, 3
    v_readfirstlane_b32 s28, v2
    s_lshl_b32 s29, s36, 2
    s_and_b32 s38, s37, 3
    s_add_u32 s29, s29, s38
    s_lshr_b32 s30, s37, 2           ; cb
    s_add_u32 s33, s38, s30
    s_and_b32 s33, s33, 3            ; rot
    s_cmp_lt_u32 s28, 4
    s_cbranch_scc1 L_main_{L}
    """)
    a(f"""
    s_sub_u32 s41, s28, 4            ; hw
    s_lshr_b32 s42, s41, 1           ; kh
    s_and_b32 s43, s41, 1            ; hw&1
    v_lshrrev_b32 v3, 5, v1
    v_and_b32 v4, 31, v1
    v_lshlrev_b32 v4, 4, v4
    v_lshl_add_u32 v5, v3, 10, v4
    s_lshl_b32 s44, s43, 1
    s_add_u32 s44, s44, s33
    s_and_b32 s45, s44, 3
    s_add_u32 s44, s44, 1
    s_and_b32 s44, s44, 3
    s_lshl_b32 s46, s42, 2
    s_add_u32 s45, s45, s46
    s_add_u32 s44, s44, s46
    s_lshl_b32 s46, s45, 12
    s_add_u32 s46, s46, {hex(KV)}
    s_lshl_b32 s47, s44, 12
    s_add_u32 s47, s47, {hex(KV)}
    v_mov_b32 v6, s45
    v_mov_b32 v7, s44
    v_cmp_gt_u32 vcc, 32, v1
    v_cndmask_b32 v6, v7, v6, vcc
    v_lshlrev_b32 v6, 8, v6
    v_lshrrev_b32 v7, 1, v4
    v_add_u32 v6, v6, v7
    v_lshrrev_b32 v8, 3, v1
    v_and_b32 v9, 7, v1
    v_bfe_u32 v10, v1, 4, 1
    v_lshlrev_b32 v10, 2, v10
    v_xor_b32 v10, v9, v10
    v_lshlrev_b32 v10, 4, v10
    v_lshl_add_u32 v12, v8, 10, v10
    v_add_u32 v13, 7168, v12
    v_add_u32 v14, 14336, v12
    v_add_u32 v15, 21504, v12
    """)
    if layer == 1:
        a(f"""
        v_lshrrev_b32 v11, 4, v1
        v_xor_b32 v11, v9, v11
        v_lshlrev_b32 v11, 4, v11
        v_lshl_add_u32 v16, v8, 10, v11
        v_xor_b32 v17, 64, v16
        v_add_u32 v17, 7168, v17
        s_lshl_b32 s48, s29, 16
        s_lshl_b32 s49, s41, 14
        s_add_u32 s48, s48, s49
        s_lshl_b32 s49, s30, 7
        s_add_u32 s48, s48, s49
        """)
    else:
        a(f"""
        v_lshl_add_u32 v16, v8, 12, v10
        v_add_u32 v17, {32768-1024}, v16
        s_lshl_b32 s48, s30, 18
        s_lshl_b32 s49, s41, 16
        s_add_u32 s48, s48, s49
        s_lshl_b32 s49, s29, 7
        s_add_u32 s48, s48, s49
        s_add_u32 s48, s48, {hex(WS_XT2)}
        """)
    a(f"""
    s_lshl_b32 s50, s42, 18
    s_lshl_b32 s49, s43, 15
    s_add_u32 s50, s50, s49
    s_lshl_b32 s49, s30, 7
    s_add_u32 s50, s50, s49
    s_lshl_b32 s51, s42, 15
    s_lshl_b32 s49, s43, 12
    s_add_u32 s51, s51, s49
    s_mov_b32 s52, s33
    s_waitcnt lgkmcnt(0)
    """)
    srd(a, 20, 10, 11, WS_SIZE)
    srd(a, 16, 6, 7, 512*512*2)
    XS = 20
    if layer == 1:
        srd(a, 12, 4, 5, 2048*512*2); XS = 12
    stamp(a, 1)
    for pr in range(4):
        so = "s46" if pr < 2 else "s47"
        a(f"buffer_load_dwordx4 {vr(32+8*pr,4)}, v5, s[20:23], {so} offen offset:{(pr&1)*2048}")
        a(f"buffer_load_dwordx4 {vr(36+8*pr,4)}, v5, s[20:23], {so} offen offset:{(pr&1)*2048+512}")
    a(f"""
    s_mov_b32 s53, {hex(KV + 32768)}
    buffer_load_dwordx2 v[30:31], v6, s[20:23], s53 offen
    s_lshl_b32 s49, s41, 11
    s_add_u32 m0, s49, {B_XR}
    s_nop 0
    buffer_load_dwordx4 v16, {sr(XS,4)}, s48 offen lds
    buffer_load_dwordx4 v17, {sr(XS,4)}, s48 offen offset:1024 lds
    """)
    def wo_stage(s):
        a(f"""
        s_lshl_b32 s49, s52, 16
        s_add_u32 s49, s49, s50
        s_add_u32 m0, s51, {s*8192}
        s_add_u32 s52, s52, 1
        s_and_b32 s52, s52, 3
        """)
        for i in range(4):
            a(f"buffer_load_dwordx4 v{12+i}, s[16:19], s49 offen offset:{i*1024} lds")
    wo_stage(0)
    a(f"""
    s_mul_i32 s49, s41, {8*544}
    s_add_u32 s49, s49, {B_KV}
    v_mul_u32_u24 v18, 544, v3
    v_add3_u32 v18, v18, v4, s49
    v_mul_u32_u24 v19, 544, v8
    v_bfe_u32 v20, v1, 1, 1
    v_lshl_add_u32 v19, v20, 4, v19
    v_and_b32 v20, 1, v1
    v_lshl_add_u32 v19, v20, 2, v19
    v_bfe_u32 v20, v1, 2, 1
    v_lshl_add_u32 v19, v20, 3, v19
    v_add_u32 v19, s49, v19
    s_waitcnt vmcnt(6)
    """)
    for pr in range(4):
        b = 32 + 8*pr
        for k in range(4):
            a(f"v_cvt_pk_bf16_f32 v{64+4*pr+k}, v{b+2*k}, v{b+2*k+1}")
        a(f"ds_write_b128 v18, {vr(64+4*pr,4)} offset:{pr*1088}")
    a("v_cvt_pk_bf16_f32 v30, v30, v31")
    a("ds_write_b32 v19, v30 offset:512")
    wo_stage(1)
    a("s_waitcnt lgkmcnt(0)")
    stamp(a, 2)
    a("s_barrier")
    wo_stage(2)
    a("s_waitcnt vmcnt(8)")
    a("s_barrier")
    wo_stage(3)
    a("s_waitcnt vmcnt(8)")
    a("s_barrier")
    a("s_waitcnt vmcnt(4)")
    a("s_barrier")
    a("s_waitcnt vmcnt(0)")
    stamp(a, 3)
    a("s_barrier")
    a("s_barrier")
    a(f"s_branch L_fin_{L}")
    a.label(f"L_main_{L}")
    PQ = 64
    ACC = 128
    NB = 160
    KF = 16
    WF = 24
    a(f"""
    s_lshr_b32 s41, s28, 1           ; rg
    s_and_b32 s42, s28, 1            ; kh
    v_lshlrev_b32 v2, 4, v1
    s_lshl_b32 s43, s29, 1
    s_add_u32 s43, s43, s41
    s_lshl_b32 s43, s43, 15
    s_lshl_b32 s44, s42, 14
    s_add_u32 s43, s43, s44
    s_add_u32 s43, s43, {hex(WS_PQ)}
    s_mov_b32 s45, s33
    s_waitcnt lgkmcnt(0)
    """)
    srd(a, 20, 10, 11, WS_SIZE)
    stamp(a, 1)
    for s in range(4):
        a(f"""
        s_lshl_b32 s44, s45, 12
        s_add_u32 s44, s44, s43
        s_add_u32 s45, s45, 1
        s_and_b32 s45, s45, 3
        """)
        for i in range(4):
            a(f"buffer_load_dwordx4 {vr(PQ+16*s+4*i,4)}, v2, s[20:23], s44 offen offset:{i*1024}")
    a(f"""
    v_lshrrev_b32 v3, 5, v1          ; h
    v_bfe_u32 v4, v1, 2, 2           ; r
    v_bfe_u32 v5, v1, 4, 1           ; G&1
    v_and_b32 v6, 3, v1              ; c4
    v_lshl_add_u32 v7, v3, 2, v4     ; 4h + r
    v_lshlrev_b32 v7, 7, v7
    v_lshl_add_u32 v7, v5, 5, v7
    v_lshl_add_u32 v7, v6, 3, v7
    v_lshrrev_b32 v8, 1, v4
    v_lshl_add_u32 v7, v8, 6, v7
    s_lshl_b32 s44, s42, 6
    v_xor_b32 v8, s44, v7
    s_lshl_b32 s44, s42, 15
    v_add_u32 v8, s44, v8
    v_xor_b32 v9, 64, v8
    v_and_b32 v10, 15, v1
    v_lshlrev_b32 v10, 4, v10
    v_lshl_add_u32 v10, v3, 8, v10
    v_lshlrev_b32 v11, 4, v3
    v_add_u32 v11, 512, v11
    v_cmp_eq_u32 vcc, 0, v5
    s_mul_i32 s44, s42, {16*544}
    s_add_u32 s44, s44, {B_KV}
    v_cndmask_b32 v10, v11, v10, vcc
    v_add_u32 v10, s44, v10
    s_mov_b32 s46, {f32(1e-6)}
    """)
    for i in range(16): a(f"v_mov_b32 v{ACC+16+i}, 0")
    if layer == 1:
        a(f"""
        v_and_b32 v11, 31, v1
        v_bfe_u32 v12, v1, 1, 3
        s_lshl_b32 s44, s42, 2
        v_xor_b32 v12, s44, v12
        v_lshlrev_b32 v12, 4, v12
        v_lshl_add_u32 v12, v11, 7, v12
        v_lshl_add_u32 v12, v3, 3, v12
        s_lshl_b32 s44, s41, 12
        s_add_u32 s44, s44, {B_XR}
        v_add_u32 v12, s44, v12
        v_xor_b32 v13, 16, v12
        v_xor_b32 v14, 32, v12
        v_xor_b32 v15, 48, v12
        """)
    else:
        a(f"""
        s_lshl_b32 s44, s41, 6
        v_xor_b32 v12, s44, v7
        s_lshl_b32 s44, s42, 12
        s_add_u32 s44, s44, {B_XR}
        v_add_u32 v12, s44, v12
        """)
    def kv_read(p): a(f"ds_read_b128 {vr(KF+4*(p&1),4)}, v10 offset:{p*544}")
    def num(p): a(f"v_mfma_f32_32x32x16_bf16 {vr(NB+16*(p&1),16)}, {vr(KF+4*(p&1),4)}, {vr(PQ+4*p,4)}, 0")
    def o_valu(p):
        n = NB + 16*(p & 1)
        out = [f"v_add_f32 v{n+8}, s46, v{n+8}", f"v_rcp_f32 v{n+8}, v{n+8}"]
        for k in range(4):
            out.append(f"v_mul_f32 v{n+2*k}, v{n+2*k}, v{n+8}")
            out.append(f"v_mul_f32 v{n+2*k+1}, v{n+2*k+1}, v{n+8}")
            out.append(f"v_cvt_pk_bf16_f32 v{PQ+4*p+k}, v{n+2*k}, v{n+2*k+1}")
        return out
    def wo_read(p):
        for t in range(2):
            for q in range(2):
                a(f"ds_read_b64_tr_b16 {vr(WF+8*(p&1)+4*t+2*q,2)}, v{8+t} offset:{p*2048+q*1024}")
    def outm(p, t): a(f"v_mfma_f32_32x32x16_bf16 {vr(ACC+16*t,16)}, {vr(WF+8*(p&1)+4*t,4)}, {vr(PQ+4*p,4)}, {vr(ACC+16*t,16)}")
    stamp(a, 2)
    a("s_barrier")
    stamp(a, 3)
    kv_read(0); kv_read(1)
    a("s_waitcnt vmcnt(15) lgkmcnt(1)")
    num(0)
    for p in range(4):
        a(f"s_waitcnt vmcnt({14-p}) lgkmcnt(0)")
        num(p+1)
        kv_read(p+2)
        for x in o_valu(p): a(x)
    a("s_barrier")
    for q in range(4):
        if layer == 1: a(f"ds_read_b64 {vr(40+2*q,2)}, v{12+q}")
        else: a(f"ds_read_b64_tr_b16 {vr(40+2*q,2)}, v12 offset:{q*1024}")
    wo_read(0)
    a("s_waitcnt lgkmcnt(4)")
    for k in range(8):
        a(f"v_lshlrev_b32 v{ACC+2*k}, 16, v{40+k}")
        a(f"v_and_b32 v{ACC+2*k+1}, 0xffff0000, v{40+k}")
    for p in range(16):
        pn = p + 4
        last_in_stage = (p & 3) == 3
        if pn + 1 < 16:
            a(f"s_waitcnt vmcnt({14-pn}) lgkmcnt(0)")
        else:
            a("s_waitcnt lgkmcnt(0)")
        vl = o_valu(pn) if pn < 16 else []
        outm(p, 0)
        if p < 15 and not last_in_stage: wo_read(p+1)
        for x in vl[:7]: a(x)
        outm(p, 1)
        for x in vl[7:]: a(x)
        if pn + 1 < 16:
            num(pn+1)
            if pn + 2 < 16: kv_read(pn+2)
        if last_in_stage and p < 15:
            a("s_barrier")
            wo_read(p+1)
    stamp(a, 4)
    a(f"""
    s_lshl_b32 s44, s28, 12
    s_add_u32 s44, s44, {B_EX}
    v_add_u32 v11, s44, v2
    v_xor_b32 v12, 4096, v11
    """)
    assert B_EX & 4096 == 0 or True
    for q in range(4): a(f"ds_write_b128 v11, {vr(ACC+16+4*q,4)} offset:{q*1024}")
    a("s_waitcnt lgkmcnt(0)")
    a("s_barrier")
    for q in range(4): a(f"ds_read_b128 {vr(NB+4*q,4)}, v12 offset:{q*1024}")
    a(f"""
    v_and_b32 v13, 31, v1
    v_mul_u32_u24 v14, {4*144}, v3
    v_lshl_add_u32 v14, v13, 1, v14
    s_mul_i32 s44, s42, {32*144}
    s_lshl_b32 s45, s41, 6
    s_add_u32 s44, s44, s45
    s_add_u32 s44, s44, {B_ST}
    v_add_u32 v14, s44, v14
    v_lshlrev_b32 v15, 13, v3
    v_lshl_add_u32 v15, v13, 2, v15
    s_lshl_b32 s44, s29, 8
    s_lshl_b32 s45, s41, 7
    s_add_u32 s44, s44, s45
    s_add_u32 s44, s44, {hex(ST)}
    """)
    for q in range(4):
        a(f"s_waitcnt lgkmcnt({3-q})" if q == 0 else f"s_waitcnt lgkmcnt({min(15, 3-q+4*q)})")
        for h2 in range(2):
            r = 4*q + 2*h2
            a(f"v_pk_add_f32 {vr(ACC+r,2)}, {vr(ACC+r,2)}, {vr(NB+r,2)}")
            a(f"v_cvt_pk_bf16_f32 v{40+2*q+h2}, v{ACC+r}, v{ACC+r+1}")
            a(f"ds_write_b16 v14, v{40+2*q+h2} offset:{(8*q+2*h2)*144}")
            a(f"ds_write_b16_d16_hi v14, v{40+2*q+h2} offset:{(8*q+2*h2+1)*144}")
            if r == 0:
                a(f"v_pk_mul_f32 v[50:51], {vr(ACC,2)}, {vr(ACC,2)}")
                a(f"v_pk_mov_b32 v[48:49], {vr(ACC,2)}, {vr(ACC,2)} op_sel:[0,1]")
            else:
                a(f"v_pk_fma_f32 v[50:51], {vr(ACC+r,2)}, {vr(ACC+r,2)}, v[50:51]")
                a(f"v_pk_add_f32 v[48:49], {vr(ACC+r,2)}, v[48:49]")
    a(f"""
    v_add_f32 v48, v48, v49
    v_add_f32 v50, v50, v51
    v_permlane32_swap_b32 v48, v50
    v_add_f32 v48, v48, v50
    buffer_atomic_add_f32 v48, v15, s[20:23], s44 offen
    s_waitcnt lgkmcnt(0)
    """)
    a.label(f"L_fin_{L}")
    a(f"""
    v_lshrrev_b32 v52, 3, v0
    v_and_b32 v53, 7, v0
    v_lshlrev_b32 v53, 4, v53
    v_mul_u32_u24 v54, 144, v52
    v_add3_u32 v54, v54, v53, s3
    v_lshl_add_u32 v55, v52, 12, v53
    s_lshl_b32 s44, s30, 18
    s_lshl_b32 s45, s29, 7
    s_add_u32 s44, s44, s45
    s_add_u32 s44, s44, {hex(XO)}
    """.replace("v_add3_u32 v54, v54, v53, s3", f"v_add_u32 v54, v54, v53\n    v_add_u32 v54, {B_ST}, v54"))
    stamp(a, 5)
    a(f"""
    s_barrier
    ds_read_b128 v[56:59], v54
    s_waitcnt lgkmcnt(0)
    buffer_store_dwordx4 v[56:59], v55, s[20:23], s44 offen
    """)
    stamp_dump(a, 1 if layer == 1 else 4, 28)
    a.label(f"L_exit_{L}")
    a("s_endpgm")
    return name, 256, 512, B_LDS
```

```python
from common import *
VGPR = 192
CP = 4160
C_K = 0
C_U = 8*CP
UP = 4608
C_EX = C_U + 2*UP
C_O = C_EX + 16384
C_LDS = C_O + 8192

def gen_C(a, layer):
    L = f"C{layer}"
    name = f"conv{layer}_kernel"
    XI = WS_XT1 if layer == 1 else WS_XT3
    ST = WS_ST1 if layer == 1 else WS_ST2
    kernel_head(a, name)
    a(f"""
    s_cmp_ge_u32 s2, 256
    s_cbranch_scc1 L_exit_{L}
    """)
    stamp_init(a)
    a(f"""
    s_load_dwordx2 s[10:11], s[0:1], {KA_WS}
    s_load_dwordx4 s[4:7], s[0:1], {KA_DSK}
    v_lshrrev_b32 v2, 6, v0
    v_and_b32 v1, 63, v0
    s_and_b32 s36, s2, 7
    s_lshr_b32 s37, s2, 3
    v_readfirstlane_b32 s28, v2
    s_lshl_b32 s29, s36, 6
    s_lshl_b32 s30, s37, 1
    s_add_u32 s29, s29, s30          ; c0
    v_lshlrev_b32 v3, 3, v0
    v_lshlrev_b32 v4, 4, v0          ; t*16 (stats)
    v_lshlrev_b32 v5, 4, v1          ; lane*16
    s_lshl_b32 s31, s29, 12
    s_add_u32 s31, s31, {hex(XI)}
    s_add_u32 s32, s31, 4096
    s_mov_b32 s33, {hex(ST)}
    s_mov_b32 s34, {hex(ST + 8192)}
    s_lshr_b32 s38, s28, 2
    s_and_b32 s39, s28, 3
    s_add_u32 s40, s29, s38
    s_mul_i32 s40, s40, {KPITCH}
    s_lshl_b32 s41, s39, 1
    s_add_u32 s40, s40, s41
    s_add_u32 s40, s40, {hex(WS_K)}
    s_mul_i32 s41, s28, {CP}
    s_mov_b32 m0, s41
    s_lshl_b32 s42, s29, 1
    s_waitcnt lgkmcnt(0)
    """)
    srd(a, 20, 10, 11, WS_SIZE)
    stamp(a, 1)
    a(f"""
    buffer_load_dwordx4 v[8:11], v4, s[20:23], s33 offen
    buffer_load_dwordx4 v[12:15], v4, s[20:23], s34 offen
    buffer_load_dwordx2 v[16:17], v3, s[20:23], s31 offen
    buffer_load_dwordx2 v[18:19], v3, s[20:23], s32 offen
    s_load_dword s43, s[4:5], s42
    """)
    for i in range(4):
        a(f"buffer_load_dwordx4 v5, s[20:23], s40 offen offset:{i*1024} lds")
    a(f"""
    v_mov_b32 v20, 0
    v_lshlrev_b32 v21, 2, v1
    v_add_u32 v21, s41, v21
    s_mov_b64 exec, 0xffff
    ds_write_b32 v21, v20 offset:4096
    s_mov_b64 exec, -1
    v_and_b32 v21, 127, v0
    v_bfe_u32 v22, v0, 7, 1
    v_mul_u32_u24 v22, {UP}, v22
    v_lshl_add_u32 v21, v21, 2, v22
    ds_write_b32 v21, v20 offset:{C_U}
    """)
    a(f"""
    s_lshr_b32 s44, s28, 1
    s_and_b32 s44, s44, 1            ; ch
    s_and_b32 s45, s28, 1            ; rh
    v_and_b32 v22, 15, v1            ; j / i
    v_lshrrev_b32 v23, 4, v1         ; g
    v_sub_u32 v24, 3, v22
    v_and_b32 v24, 3, v24
    v_mul_u32_u24 v25, {CP}, v24
    v_add_u32 v24, v24, v22
    v_sub_u32 v24, 15, v24
    v_lshl_add_u32 v24, v23, 3, v24
    v_lshl_add_u32 v24, v24, 1, v25
    s_mul_i32 s46, s44, {4*CP}
    s_lshl_b32 s47, s45, 8
    s_sub_u32 s46, s46, s47
    s_add_u32 s46, s46, 256
    v_add_u32 v6, s46, v24
    ; B: byte = 512 + 2*(32b + 16i + 8g - 16), b = 8s' - r
    v_lshlrev_b32 v25, 5, v22
    v_lshl_add_u32 v25, v23, 4, v25
    s_mul_i32 s46, s44, {UP}
    s_sub_u32 s46, s46, s47
    s_add_u32 s46, s46, {C_U + 512 - 32 - 192}
    v_add_u32 v7, s46, v25
    v_mov_b32 v26, {f32(1.0/512)}
    s_waitcnt vmcnt(6)
    """)
    for k in range(4):
        a(f"v_mul_f32 v{8+k}, {f32(-1.0/512)}, v{8+k}")
    for k in range(4):
        a(f"v_mul_f32 v{28+k}, v{8+k}, v{8+k}")
    for k in range(4):
        a(f"v_fma_f32 v{12+k}, v{12+k}, v26, -v{28+k}")
    for k in range(4):
        a(f"v_max_f32 v{12+k}, 0, v{12+k}")
    for k in range(4):
        a(f"v_add_f32 v{12+k}, {f32(1e-5)}, v{12+k}")
    for k in range(4):
        a(f"v_rsq_f32 v{12+k}, v{12+k}")
    for k in range(4):
        a(f"v_mul_f32 v{8+k}, v{8+k}, v{12+k}")
    a("s_waitcnt vmcnt(4)")
    for ch in range(2):
        for d in range(2):
            a(f"v_lshlrev_b32 v{28+2*d}, 16, v{16+2*ch+d}")
            a(f"v_and_b32 v{29+2*d}, 0xffff0000, v{16+2*ch+d}")
        for k in range(4):
            a(f"v_fma_f32 v{28+k}, v{28+k}, v{12+k}, v{8+k}")
        for d in range(2):
            a(f"v_cvt_pk_bf16_f32 v{32+2*ch+d}, v{28+2*d}, v{29+2*d}")
        a(f"ds_write_b64 v3, {vr(32+2*ch,2)} offset:{C_U + 512 + ch*UP}")
    a(f"""
    s_cmp_ge_u32 s28, 4
    s_cbranch_scc1 L_help_{L}
    """)
    a(f"""
    v_lshlrev_b32 v27, 5, v22
    v_lshl_add_u32 v27, v23, 3, v27
    s_lshl_b32 s46, s44, 12
    s_lshl_b32 s47, s45, 11
    s_add_u32 s46, s46, s47
    s_add_u32 s48, s46, s31
    """)
    for k in range(4):
        a(f"buffer_load_dwordx2 {vr(8+2*k,2)}, v27, s[20:23], s48 offen offset:{k*512}")
    ACC = 32
    FA = [64, 128]; FB = [96, 160]
    a("s_waitcnt vmcnt(4) lgkmcnt(0)")
    stamp(a, 2)
    a("s_barrier")
    stamp(a, 3)
    def reads(s, rr):
        out = []
        o = (3-rr)*64
        for k in range(8):
            out.append(f"ds_read_b64 {vr(FA[s]+4*k,2)}, v6 offset:{(7-k)*512+o}")
            out.append(f"ds_read_b64 {vr(FA[s]+4*k+2,2)}, v6 offset:{(7-k)*512+o+8}")
            out.append(f"ds_read_b128 {vr(FB[s]+4*k,4)}, v7 offset:{k*512+o}")
        return out
    def mfmas(s, first):
        out = []
        pairs = sorted([(aa, t-aa) for t in range(8) for aa in range(t+1)], key=lambda p: (max(p), p[0]+p[1]))
        seen = set()
        for aa, sp in pairs:
            t = aa + sp
            c = "0" if (first and t not in seen) else vr(ACC+4*t,4)
            seen.add(t)
            out.append((max(aa, sp), f"v_mfma_f32_16x16x32_bf16 {vr(ACC+4*t,4)}, {vr(FA[s]+4*aa,4)}, {vr(FB[s]+4*sp,4)}, {c}"))
        return out
    rd = reads(0, 0)
    for x in rd: a(x)
    for rr in range(4):
        s = rr & 1
        nxt = reads(1-s, rr+1) if rr < 3 else []
        mf = mfmas(s, rr == 0)
        if rr == 0:
            done = -1; issued = 0
            for lvl, m in mf:
                if lvl > done:
                    rem = 24 - 3*(lvl+1)
                    a(f"s_waitcnt lgkmcnt({min(15, rem + issued)})" if rem + issued <= 15 else "s_waitcnt lgkmcnt(15)")
                    if rem + issued > 15:
                        pass
                    done = lvl
                a(m)
                if lvl == 7 or False: pass
            for x in nxt: a(x)
        else:
            a("s_waitcnt lgkmcnt(0)")
            k = 0
            for idx, (lvl, m) in enumerate(mf):
                a(m)
                if k < len(nxt):
                    a(nxt[k]); k += 1
    stamp(a, 4)
    F = 64
    a(f"""
    s_lshl_b32 s47, s28, 12
    s_add_u32 s47, s47, {C_EX}
    v_add_u32 v24, s47, v5
    s_xor_b32 s47, s28, 1
    s_lshl_b32 s47, s47, 12
    s_add_u32 s47, s47, {C_EX}
    v_add_u32 v25, s47, v5
    s_mul_i32 s47, s44, {UP}
    s_lshl_b32 s49, s45, 11
    s_add_u32 s47, s47, s49
    s_add_u32 s47, s47, {C_U + 512}
    v_add_u32 v26, s47, v27
    s_cmp_eq_u32 s45, 0
    s_cbranch_scc1 L_x0_{L}
    """)
    for keep in (1, 0):
        if keep == 0: a.label(f"L_x0_{L}")
        kb = ACC + 16*keep; sb = ACC + 16*(1-keep)
        a("s_nop 7")
        for q in range(4): a(f"ds_write_b128 v24, {vr(sb+4*q,4)} offset:{q*1024}")
        for q in range(8): a(f"v_pk_mov_b32 {vr(F+2*q,2)}, {vr(kb+2*q,2)}, {vr(kb+2*q,2)} op_sel:[0,1]")
        if keep == 1: a(f"s_branch L_x1_{L}")
    a.label(f"L_x1_{L}")
    for k in range(4): a(f"ds_read_b64 {vr(16+2*k,2)}, v26 offset:{k*512}")
    a(f"""
    s_lshr_b32 s47, s43, 16
    s_and_b32 s49, s43, 0xffff
    s_cmp_eq_u32 s44, 0
    s_cselect_b32 s47, s49, s47
    s_lshl_b32 s47, s47, 16
    s_waitcnt vmcnt(0) lgkmcnt(0)
    s_barrier
    """)
    for q in range(4): a(f"ds_read_b128 {vr(80+4*q,4)}, v25 offset:{q*1024}")
    for k in range(8):
        a(f"v_lshlrev_b32 v28, 16, v{8+k}")
        a(f"v_and_b32 v29, 0xffff0000, v{8+k}")
        a(f"v_lshlrev_b32 v30, 16, v{16+k}")
        a(f"v_and_b32 v31, 0xffff0000, v{16+k}")
        a(f"v_pk_add_f32 {vr(F+2*k,2)}, {vr(F+2*k,2)}, v[28:29]")
        a(f"v_fmac_f32 v{F+2*k}, s47, v30")
        a(f"v_fmac_f32 v{F+2*k+1}, s47, v31")
    a("s_waitcnt lgkmcnt(0)")
    for k in range(8):
        a(f"v_pk_add_f32 {vr(F+2*k,2)}, {vr(F+2*k,2)}, {vr(80+2*k,2)}")
        a(f"v_cvt_pk_bf16_f32 v{8+k}, v{F+2*k}, v{F+2*k+1}")
    stamp(a, 5)
    if layer == 1:
        a(f"""
        s_lshl_b32 s48, s29, 12
        s_add_u32 s48, s48, s46
        s_add_u32 s48, s48, {hex(WS_XT2)}
        """)
        for k in range(4):
            a(f"buffer_store_dwordx2 {vr(8+2*k,2)}, v27, s[20:23], s48 offen offset:{k*512}")
        a(f"s_branch L_end_{L}")
        a.label(f"L_help_{L}")
        a("s_waitcnt vmcnt(0) lgkmcnt(0)")
        a("s_barrier")
    else:
        a(f"""
        v_lshlrev_b32 v24, 1, v27
        s_lshl_b32 s47, s45, 12
        s_lshl_b32 s49, s44, 1
        s_add_u32 s47, s47, s49
        s_add_u32 s47, s47, {C_O}
        v_add_u32 v24, s47, v24
        """)
        for k in range(4):
            for d in range(2):
                a(f"ds_write_b16 v24, v{8+2*k+d} offset:{k*1024+d*8}")
                a(f"ds_write_b16_d16_hi v24, v{8+2*k+d} offset:{k*1024+d*8+4}")
        a("s_waitcnt lgkmcnt(0)")
        a(f"s_branch L_fin_{L}")
        a.label(f"L_help_{L}")
        a("s_waitcnt vmcnt(0) lgkmcnt(0)")
        a("s_barrier")
        a("s_barrier")
        a.label(f"L_fin_{L}")
        srd(a, 12, 6, 7, 2048*512*2)
        a(f"""
        v_lshlrev_b32 v24, 2, v0
        v_lshlrev_b32 v25, 10, v0
        s_lshl_b32 s47, s29, 1
        s_barrier
        """)
        for k in range(4): a(f"ds_read_b32 v{28+k}, v24 offset:{C_O + k*2048}")
        for k in range(4):
            a(f"s_waitcnt lgkmcnt({3-k})")
            a(f"buffer_store_dword v{28+k}, v25, s[12:15], s47 offen")
            if k < 3: a(f"s_add_u32 s47, s47, {512*1024}")
    a.label(f"L_end_{L}")
    stamp_dump(a, 2 if layer == 1 else 5, 28)
    a.label(f"L_exit_{L}")
    a("s_endpgm")
    return name, 256, 512, C_LDS
```

```python
from common import *
from kA import zero_kv1, set_flag
import math
G_TAB = 8704
G_WAVE = 13824

def cmul(a, d, x, y, t):
    a(f"v_pk_mul_f32 {vr(t,2)}, {vr(x,2)}, {vr(y,2)} op_sel_hi:[1,0]")
    a(f"v_pk_fma_f32 {vr(d,2)}, {vr(x,2)}, {vr(y,2)}, {vr(t,2)} op_sel:[1,1,0] op_sel_hi:[0,1,1] neg_lo:[1,0,0]")

def cmul2(a, d, x, y, t):
    for u in range(2): a(f"v_pk_mul_f32 {vr(t+2*u,2)}, {vr(x+2*u,2)}, {vr(y+2*u,2)} op_sel_hi:[1,0]")
    for u in range(2): a(f"v_pk_fma_f32 {vr(d+2*u,2)}, {vr(x+2*u,2)}, {vr(y+2*u,2)}, {vr(t+2*u,2)} op_sel:[1,1,0] op_sel_hi:[0,1,1] neg_lo:[1,0,0]")

def gen_kgen(a):
    L2E_hi = struct.unpack("<f", struct.pack("<f", LOG2E))[0]
    L2E_lo = LOG2E - L2E_hi
    a(f"""
    s_load_dwordx8 s[56:63], s[0:1], {KA_ARE}
    s_load_dwordx4 s[64:67], s[0:1], {KA_CRE}
    s_load_dwordx2 s[68:69], s[0:1], {KA_LDT}
    s_sub_u32 s29, s37, 24
    s_lshl_b32 s29, s29, 3
    s_add_u32 s29, s29, s36          ; kg
    s_lshl_b32 s30, s29, 3
    s_add_u32 s30, s30, s28          ; channel
    s_lshl_b32 s31, s30, 8
    v_lshl_add_u32 v2, v1, 2, s31
    s_lshl_b32 s31, s30, 1
    v_mov_b32 v3, s31
    s_mul_i32 s32, s28, {G_WAVE}
    v_lshl_add_u32 v4, v1, 3, s32
    v_and_b32 v6, 15, v1
    v_lshrrev_b32 v7, 4, v1          ; g
    v_mul_u32_u24 v5, 544, v6
    v_lshl_add_u32 v5, v7, 4, v5
    v_add_u32 v5, s32, v5
    s_waitcnt lgkmcnt(0)
    global_load_ushort v14, v3, s[68:69]
    global_load_dword v8, v2, s[56:57]
    global_load_dword v9, v2, s[58:59]
    global_load_dword v10, v2, s[60:61]
    global_load_dword v11, v2, s[62:63]
    global_load_dword v12, v2, s[64:65]
    global_load_dword v13, v2, s[66:67]
    """)
    srd(a, 20, 10, 11, WS_SIZE)
    srd(a, 24, 8, 9, 256)
    a(f"""
    v_mov_b32 v60, 0
    v_mov_b32 v61, 0
    v_mov_b32 v62, 0
    v_mov_b32 v63, 0
    s_mul_i32 s33, s29, 1088
    s_add_u32 s33, s33, {hex(WS_KV2)}
    v_lshlrev_b32 v64, 4, v0
    v_cmp_gt_u32 vcc, 68, v0
    s_and_saveexec_b64 s[34:35], vcc
    s_cbranch_execz L_kg_nz
    buffer_store_dwordx4 v[60:63], v64, s[20:23], s33 offen
    L_kg_nz:
    s_mov_b64 exec, -1
    s_mov_b32 s70, 1
    s_cmp_lg_u32 s30, 0
    s_cbranch_scc1 L_kg_go
    v_mov_b32 v66, 1
    v_mov_b32 v67, 0
    s_mov_b64 exec, 1
    buffer_atomic_add v66, v67, s[24:27], 0 offen sc0 sc1
    s_waitcnt vmcnt(0)
    s_mov_b64 exec, -1
    v_readfirstlane_b32 s70, v66
    s_cmp_lg_u32 s70, 0
    s_cbranch_scc1 L_kg_go
    """)
    zero_kv1(a, "kg")
    set_flag(a)
    a.label("L_kg_go")
    stamp(a, 1)
    a(f"""
    s_waitcnt vmcnt(0)
    v_lshlrev_b32 v14, 16, v14
    s_mov_b32 s40, {f32(L2E_hi)}
    v_mul_f32 v15, s40, v14
    v_fma_f32 v16, v14, s40, -v15
    v_mov_b32 v17, {f32(L2E_lo)}
    v_fmac_f32 v16, v14, v17
    v_exp_f32 v15, v15
    v_mul_f32 v16, {f32(math.log(2.0))}, v16
    v_fma_f32 v15, v15, v16, v15
    v_cvt_pk_bf16_f32 v15, v15, v15
    v_lshlrev_b32 v15, 16, v15       ; dt
    """)
    stamp(a, 2)
    for k, (re, im) in enumerate(((8, 9), (10, 11), (12, 13))):
        b = 16 + 4*k
        a(f"v_lshlrev_b32 v{b}, 16, v{re}")
        a(f"v_lshlrev_b32 v{b+1}, 16, v{im}")
        a(f"v_and_b32 v{b+2}, 0xffff0000, v{re}")
        a(f"v_and_b32 v{b+3}, 0xffff0000, v{im}")
    for i in range(8): a(f"v_mul_f32 v{16+i}, v15, v{16+i}")
    TMP = 8
    GC = 28
    cmul2(a, GC, 24, 20, TMP)
    H = lambda b: 32 + 4*(b-1)
    F1, G1, FC = 68, 72, 76
    for dst, Lm in ((H(1), 1), (F1, 8), (G1, 128)):
        for u in range(2):
            a(f"v_mul_f32 v{20+2*u}, {f32(LOG2E*Lm)}, v{16+2*u}")
            a(f"v_mul_f32 v{21+2*u}, {f32(Lm/(2*math.pi))}, v{17+2*u}")
        for u in range(2):
            a(f"v_exp_f32 v{20+2*u}, v{20+2*u}")
            a(f"v_fract_f32 v{21+2*u}, v{21+2*u}")
        for u in range(2):
            a(f"v_cos_f32 v{dst+2*u}, v{21+2*u}")
            a(f"v_sin_f32 v{dst+2*u+1}, v{21+2*u}")
        for u in range(2):
            a(f"v_pk_mul_f32 {vr(dst+2*u,2)}, {vr(dst+2*u,2)}, {vr(20+2*u,2)} op_sel_hi:[1,0]")
    PKR = [12, 14]
    cnt = [0]
    def wr(row, src, conj=False):
        p = PKR[cnt[0] & 1]; cnt[0] += 1
        n = "-" if conj else ""
        a(f"v_cvt_pk_bf16_f32 v{p}, v{src}, {n}v{src+1}")
        a(f"v_cvt_pk_bf16_f32 v{p+1}, v{src+2}, {n}v{src+3}")
        a(f"ds_write_b64 v4, {vr(p,2)} offset:{row*544}")
    a("v_mov_b32 v24, 0x3f80")
    a("v_mov_b32 v25, 0x3f80")
    a("ds_write_b64 v4, v[24:25]")
    wr(1, F1, True)
    src = F1
    for j in range(2, 16):
        cmul2(a, FC, src, F1, TMP); src = FC
        wr(j, FC, True)
    stamp(a, 3)
    FF = 80
    for ks in range(8): a(f"ds_read_b128 {vr(FF+4*ks,4)}, v5 offset:{ks*64}")
    for b in range(2, 8):
        cmul2(a, H(b), H(b-1), H(1), TMP)
    EF = 112
    D = 144
    gi = [0]
    def gstep(): cmul2(a, GC, GC, G1, TMP); gi[0] += 1
    def erow(row, b):
        if b == 0: wr(row, GC)
        else:
            cmul2(a, FC, GC, H(b), TMP); wr(row, FC)
    def tile_mma(t):
        for ks in range(8): a(f"ds_read_b128 {vr(EF+4*ks,4)}, v5 offset:{ks*64}")
    def tile_fin(t):
        for ks in range(8):
            a(f"s_waitcnt lgkmcnt({min(15, pend[0] + 7 - ks)})") if False else None
        a("s_waitcnt lgkmcnt(0)")
        for ks in range(8):
            c = "0" if ks == 0 else vr(D+4*t,4)
            a(f"v_mfma_f32_16x16x32_bf16 {vr(D+4*t,4)}, {vr(EF+4*ks,4)}, {vr(FF+4*ks,4)}, {c}")
    pend = [0]
    for i in range(2):
        if i: gstep()
        for b in range(8): erow(8*i+b, b)
    tile_mma(0); tile_fin(0)
    for i in (2, 3):
        gstep()
        rr = 2*(i-2)
        erow(0+rr, 0); erow(0+rr+1, 4); erow(4+rr, 2); erow(4+rr+1, 6)
    for i in range(4, 8):
        gstep()
        row = 8 + 2*(i-4)
        erow(row, 0); erow(row+1, 4)
    tile_mma(1); tile_fin(1)
    for i in range(8, 17):
        gstep(); erow(i-8, 0)
    tile_mma(2); tile_fin(2)
    stamp(a, 4)
    a(f"""
    s_add_u32 s33, s32, {G_TAB}
    v_lshl_add_u32 v16, v6, 4, s33       ; T + 16 j
    v_lshrrev_b32 v17, 1, v7             ; g>>1
    v_and_b32 v18, 1, v7                 ; g&1
    v_lshl_add_u32 v19, v17, 8, v16
    v_lshl_add_u32 v19, v18, 3, v19      ; tile0: 2*(128(g>>1) + 4(g&1))
    v_mul_u32_u24 v20, 508, v17
    v_add_u32 v20, 4, v20
    v_mul_u32_u24 v20, v20, v18
    v_lshl_add_u32 v20, v17, 9, v20
    v_add_u32 v20, v20, v16
    v_mul_u32_u24 v21, 1022, v17
    v_sub_u32 v21, 1024, v21
    v_mul_u32_u24 v21, v21, v18
    v_lshl_add_u32 v21, v17, 11, v21
    v_add_u32 v21, v21, v16
    """)
    offs = [[2*r for r in range(4)], [512 + 256*(r >> 1) + 8*(r & 1) for r in range(4)], [2048 + 256*r for r in range(4)]]
    for t in range(3):
        for p in range(2):
            a(f"v_cvt_pk_bf16_f32 v{24+2*t+p}, v{D+4*t+2*p}, v{D+4*t+2*p+1}")
        for p in range(2):
            a(f"ds_write_b16 v{19+t}, v{24+2*t+p} offset:{offs[t][2*p]}")
            a(f"ds_write_b16_d16_hi v{19+t}, v{24+2*t+p} offset:{offs[t][2*p+1]}")
    a(f"""
    v_sub_u32 v16, 63, v1
    v_lshl_add_u32 v17, v16, 4, s33
    v_lshrrev_b32 v18, 5, v16
    v_lshlrev_b32 v18, 1, v18
    v_sub_u32 v19, v17, v18              ; addrM
    v_add_u32 v20, v17, v18              ; addrP
    v_and_b32 v18, 1, v16
    v_lshl_add_u32 v21, v18, 4, v17
    v_lshlrev_b32 v22, 4, v1
    s_mul_i32 s34, s30, {KPITCH}
    s_add_u32 s34, s34, {hex(WS_K)}
    """)
    def rd(dst, addr, off):
        a(f"ds_read_u16 v{dst}, v{addr} offset:{off}")
    def pk(dst, lo, hi):
        a(f"v_lshl_or_b32 v{dst}, v{hi}, 16, v{lo}")
    O = 32; Rr = 48
    for k, lo_addr in enumerate((20, 19, 20, 19)):
        rd(Rr+2*k, lo_addr, 14-4*k); rd(Rr+2*k+1, 17, 12-4*k)
    for i in range(3): rd(Rr+8+i, 17, 1024 + 8*i)
    for p in (2, 3):
        b = Rr + 11 + 3*(p-2)
        rd(b, 17, 1024*p); rd(b+1, 17, 1024*p + 16); rd(b+2, 21, 1024*p)
    a("s_waitcnt lgkmcnt(9)")
    for k in range(4): pk(O+k, Rr+2*k, Rr+2*k+1)
    a(f"buffer_store_dwordx4 {vr(O,4)}, v22, s[20:23], s34 offen offset:3072")
    a("s_waitcnt lgkmcnt(6)")
    pk(O+4, Rr+10, Rr+10); pk(O+5, Rr+9, Rr+9); pk(O+6, Rr+9, Rr+8); pk(O+7, Rr+8, Rr+8)
    a(f"buffer_store_dwordx4 {vr(O+4,4)}, v22, s[20:23], s34 offen offset:2048")
    a("s_waitcnt lgkmcnt(0)")
    for p in (2, 3):
        b = Rr + 11 + 3*(p-2)
        pk(O+4*p, b+1, b+1); pk(O+4*p+1, b+1, b+2); pk(O+4*p+2, b, b); pk(O+4*p+3, b, b)
        a(f"buffer_store_dwordx4 {vr(O+4*p,4)}, v22, s[20:23], s34 offen offset:{1024*(3-p)}")
    a(f"""
    s_add_u32 s34, s34, 4096
    v_mov_b32 v60, 0
    v_lshlrev_b32 v22, 2, v1
    s_mov_b32 exec_hi, 0
    buffer_store_dword v60, v22, s[20:23], s34 offen
    """)
```

```python
import sys
sys.path.insert(0, "gen")
from common import *
import kA, kG

def build(parts, out):
    a = Asm()
    launches = []; descs = []
    body = Asm()
    for fn, vg in parts:
        name, nwg, blk, lds = fn(body)
        launches.append(f"; @launch kernel={name} grid=({nwg},1,1) block=({blk},1,1) lds={lds}")
        descs.append(descriptor(name, vg))
    hdr = open("cdna_kernels/" + NAME + ".s.ref").read().split("; Override")[0]
    txt = hdr + "\n".join(launches) + "\n" + '.amdgcn_target "amdgcn-amd-amdhsa--gfx950"\n.text\n' + body.text() + '.section .rodata,"a"\n' + "".join(descs)
    open(out, "w").write(txt)
    print("wrote", out, len(txt), "bytes; auto nops:", body.nops)

if __name__ == "__main__":
    out = sys.argv[1] if len(sys.argv) > 1 else "k.s"
    parts = [(lambda a: kA.gen_A(a, 1, kG.gen_kgen), 256)]
    try:
        import kB, kC
        parts += [(lambda a: kB.gen_B(a, 1), kB.VGPR), (lambda a: kC.gen_C(a, 1), kC.VGPR),
                  (lambda a: kA.gen_A(a, 2), 256), (lambda a: kB.gen_B(a, 2), kB.VGPR), (lambda a: kC.gen_C(a, 2), kC.VGPR)]
    except ImportError:
        parts += [(lambda a: kA.gen_A(a, 2), 256)]
    build(parts, out)
```
